```python
import torch

def _softmax(x, axis=-1):
    return torch.softmax(x, dim=axis)
def _gelu(x):
    return torch.nn.functional.gelu(x, approximate="tanh")
def _silu(x):
    return torch.nn.functional.silu(x)
def _sigmoid(x):
    return torch.sigmoid(x)
def _layernorm(x, axis=-1, eps=1e-5):
    m = x.mean(dim=axis, keepdim=True)
    v = x.var(dim=axis, keepdim=True, unbiased=False)
    return (x - m) / torch.sqrt(v + eps)
def _scatter_add(tgt, idx, src, axis=0):
    return tgt.clone().index_add_(axis, idx, src)
def _segment_sum(src, seg, n):
    out = torch.zeros((n,) + src.shape[1:], dtype=src.dtype)
    return out.index_add_(0, seg, src)
def _pad(x, pw):
    flat = tuple(v for pair in reversed(pw) for v in pair)
    return torch.nn.functional.pad(x, flat)

kernel_name = 'recurrent_scan__ssm_conv_h3__glu_gated_geglu__prompt'

def setup_inputs():

    _w = (lambda a: (lambda t: t.to(torch.bfloat16) if t.is_floating_point() else t)(torch.as_tensor(a)))
    def _A_setup():
        B, S, D = 1, 2048, 448
        ks = 4
        return {
            "q": _w((lambda *s: torch.randn(*s, dtype=torch.bfloat16) * 0.05)(B, S, D)),
            "k": _w((lambda *s: torch.randn(*s, dtype=torch.bfloat16) * 0.8)(B, S, D)),
            "v": _w((lambda *s: torch.randn(*s, dtype=torch.bfloat16) * 0.8)(B, S, D)),
            "shift_k": _w((lambda *s: torch.randn(*s, dtype=torch.bfloat16) * 0.8)(D, ks) * 0.5),
            "ssm_k": _w((lambda *s: torch.randn(*s, dtype=torch.bfloat16) * 1.6)(D, S) * (1.0 / S ** 0.5)),
            "ssm_D": _w((lambda *s: torch.randn(*s, dtype=torch.bfloat16) * 0.8)(D)),
        }
    _A_in = _A_setup()

    def _B_setup():
        B, S, Dm, Df = 1, 2048, 448, 1792
        return {
            "x": _w((lambda *s: torch.randn(*s, dtype=torch.bfloat16) * 0.05)(B, S, Dm)),
            "w_gate": _w((lambda *s: torch.randn(*s, dtype=torch.bfloat16) * 0.2)(Dm, Df) * (Dm ** -0.5)),
            "w_up": _w((lambda *s: torch.randn(*s, dtype=torch.bfloat16) * 0.2)(Dm, Df) * (Dm ** -0.5)),
            "w_down": _w((lambda *s: torch.randn(*s, dtype=torch.bfloat16) * 0.2)(Df, Dm) * (Df ** -0.5)),
        }
    _B_in = _B_setup()

    return {
        "A_q": _A_in["q"],
        "A_k": _A_in["k"],
        "A_v": _A_in["v"],
        "A_shift_k": _A_in["shift_k"],
        "A_ssm_k": _A_in["ssm_k"],
        "A_ssm_D": _A_in["ssm_D"],
        "B_x": _B_in["x"],
        "B_w_gate": _B_in["w_gate"],
        "B_w_up": _B_in["w_up"],
        "B_w_down": _B_in["w_down"],
    }

def reference(A_q, A_k, A_v, A_shift_k, A_ssm_k, A_ssm_D, B_x, B_w_gate, B_w_up, B_w_down):
    def _A_ref(q, k, v, shift_k, ssm_k, ssm_D):
        B, S, D = q.shape
        ks = shift_k.shape[-1]
        k_pad = _pad(k, ((0, 0), (ks - 1, 0), (0, 0)))
        k_shift = torch.zeros_like(k)
        for t in range(ks):
            k_shift = k_shift + k_pad[:, t:t + S, :] * shift_k[:, ks - 1 - t][None, None, :]
        kv = k_shift * v
        L = 2 * S
        kv_pad = _pad(kv, ((0, 0), (0, S), (0, 0)))
        kf_pad = _pad(ssm_k, ((0, 0), (0, S)))
        kv_f = (lambda x, axes=(-2,-1): torch.fft.rfft2(x.float(), dim=axes))(kv_pad[:, None, :, :], axes=(1, 2))
        kf_f = (lambda x, axes=(-2,-1): torch.fft.rfft2(x.float(), dim=axes))(kf_pad[:, None, :], axes=(1, 2))
        kf_f = (lambda x, *d: x.permute(*d))(kf_f, 1, 2, 0)
        y_f = kv_f * kf_f[None, :, :, :]
        y = (lambda x, s, axes=(-2,-1): torch.fft.irfft2(x, s=s, dim=axes).to(torch.bfloat16))(y_f, (1, L), axes=(1, 2))[:, 0, :S, :]
        y = y + kv * ssm_D[None, None, :]
        return q * y

    def _B_ref(x, w_gate, w_up, w_down):
        g = torch.einsum("bsd,df->bsf", x, w_gate)
        u = torch.einsum("bsd,df->bsf", x, w_up)
        h = _gelu(g) * u
        return torch.einsum("bsf,fd->bsd", h, w_down)

    x = A_q
    xn = _layernorm(x, axis=-1)
    s = _A_ref(xn, A_k, A_v, A_shift_k, A_ssm_k, A_ssm_D)
    g = _silu(_B_ref(xn, B_w_gate, B_w_up, B_w_down))
    return x + s * g
```

```python
from hx import *
PRO = """
 s_load_dwordx2 s[4:5], s[0:1], 0
 v_lshrrev_b32 v1, 6, v0
 s_nop 0
 v_readfirstlane_b32 s20, v1
 s_waitcnt lgkmcnt(0)
 s_mov_b32 s8, s4
 s_mov_b32 s9, s5
 s_mov_b32 s10, 0x100000
 s_mov_b32 s11, 0x20000
"""
INIT = "".join(f" v_mov_b32 v{i}, 1.0\n" for i in range(2, 128))
def timed(bodyA, bodyB=None, iters=200, pre=''):
    s = PRO + INIT + pre + " s_barrier\n s_memtime s[12:13]\n s_waitcnt lgkmcnt(0)\n s_mov_b32 s21, %d\n" % iters
    if bodyB is not None:
        s += " s_cmp_ge_u32 s20, 4\n s_cbranch_scc1 LB\n"
    s += "LA:\n" + bodyA + " s_sub_u32 s21, s21, 1\n s_cmp_lg_u32 s21, 0\n s_cbranch_scc1 LA\n"
    if bodyB is not None:
        s += " s_branch LE\nLB:\n" + bodyB + " s_sub_u32 s21, s21, 1\n s_cmp_lg_u32 s21, 0\n s_cbranch_scc1 LB\n"
    s += """LE:
 s_nop 15
 s_memtime s[14:15]
 s_waitcnt lgkmcnt(0)
 s_sub_u32 s14, s14, s12
 v_mov_b32 v2, s14
 s_lshl_b32 s3, s2, 4
 s_add_u32 s3, s3, s20
 s_lshl_b32 s3, s3, 2
 v_mov_b32 v3, s3
 buffer_store_dword v2, v3, s[8:11], 0 offen
 s_waitcnt vmcnt(0)
"""
    return s
def rep(f, n): return "".join(f(i) for i in range(n))
fma = lambda i: f" v_fma_f32 v{2+(i%32)}, v{2+(i%32)}, v40, v41\n"
mul = lambda i: f" v_mul_f32 v{2+(i%32)}, v{2+(i%32)}, v40\n"
pkfma = lambda i: f" v_pk_fma_f32 v[{2+2*(i%16)}:{3+2*(i%16)}], v[{2+2*(i%16)}:{3+2*(i%16)}], v[40:41], v[42:43]\n"
pkmul = lambda i: f" v_pk_mul_f32 v[{2+2*(i%16)}:{3+2*(i%16)}], v[{2+2*(i%16)}:{3+2*(i%16)}], v[40:41]\n"
exp = lambda i: f" v_exp_f32 v{2+(i%32)}, v{2+(i%32)}\n"
rcp = lambda i: f" v_rcp_f32 v{2+(i%32)}, v{2+(i%32)}\n"
cvt = lambda i: f" v_cvt_pk_bf16_f32 v{2+(i%32)}, v40, v41\n"
m32 = lambda i: f" v_mfma_f32_32x32x16_bf16 v[{64+16*(i%4)}:{79+16*(i%4)}], v[44:47], v[48:51], v[{64+16*(i%4)}:{79+16*(i%4)}]\n"
m16 = lambda i: f" v_mfma_f32_16x16x32_bf16 v[{64+4*(i%8)}:{67+4*(i%8)}], v[44:47], v[48:51], v[{64+4*(i%8)}:{67+4*(i%8)}]\n"
def mix(m, f, k, n=16):
    return "".join(m(i) + "".join(f(i*k+j) for j in range(k)) for i in range(n))
```

```python
from hx import *
from mb1lib import *
pk = lambda i: f" v_pk_mul_f32 v[{2+2*(i%8)}:{3+2*(i%8)}], v[{2+2*(i%8)}:{3+2*(i%8)}], v[40:41]\n"
pkf = lambda i: f" v_pk_fma_f32 v[{2+2*(i%8)}:{3+2*(i%8)}], v[{2+2*(i%8)}:{3+2*(i%8)}], v[40:41], v[42:43]\n"
f2 = lambda i: f" v_fma_f32 v{20+(i%16)}, v{20+(i%16)}, v40, v41\n"
ex = lambda i: f" v_exp_f32 v{20+(i%16)}, v{20+(i%16)}\n"
ds = lambda i: f" ds_read_b128 v[{52}:{55}], v60 offset:{1024*(i%8)}\n"
sn = lambda i: " s_nop 0\n"
S = {'p': pk, 'P': pkf, 'f': f2, 'e': ex, 'd': ds, 'n': sn}
pre = " v_and_b32 v60, 63, v0\n v_lshlrev_b32 v60, 4, v60\n"
out = DeviceBuffer(1 << 20) if ON_GPU else None
for pat in ('', 'p', 'pp', 'fp', 'ffp', 'fffp', 'ffffp', 'fffffp', 'ffffpp', 'fffpp', 'fffppp', 'nnnnp', 'nnnnnp', 'eep', 'eepp', 'dfffp', 'pfff', 'pffff', 'ppppp', 'pppppp', 'pppppppp', 'ffffPP', 'P'):
    body = ''.join(m32(i) + ''.join(S[c](i * 8 + j) for j, c in enumerate(pat)) for i in range(16)) + " s_waitcnt lgkmcnt(0)\n"
    k = load('k' + (pat or 'x'), timed(body, None, pre=pre), vgpr=128, accum=128)
    if not ON_GPU: continue
    memset(out); k.launch((256, 1, 1), (256, 1, 1), kargs(out.ptr), shared_mem=32768); sync()
    r = out.to_numpy(np.uint32, (256, 16))[:, :4] / (200 * 16)
    print(f'{pat:10s} {r.mean():.1f}')
```

```python
from hx import *
def kern(mode, ndma, nseg=16):
    s = """
 s_load_dwordx2 s[4:5], s[0:1], 0
 s_load_dwordx2 s[16:17], s[0:1], 8
 v_lshrrev_b32 v1, 6, v0
 v_and_b32 v3, 63, v0
 v_readfirstlane_b32 s20, v1
 s_waitcnt lgkmcnt(0)
 s_mov_b32 s8, s4
 s_mov_b32 s9, s5
 s_mov_b32 s10, 0x1000000
 s_mov_b32 s11, 0x20000
 s_add_u32 s28, s4, 0x100000
 s_addc_u32 s29, s5, 0
 s_mov_b32 s30, 0x800000
 s_mov_b32 s31, 0x20000
 s_mov_b32 s18, 0x200000
 s_mov_b32 s19, 0x20000
 v_lshlrev_b32 v2, 4, v0
 v_lshlrev_b32 v3, 4, v3
 s_lshl_b32 s47, s20, 10
 s_lshl_b32 s48, s2, 13
"""
    for i in range(28):
        s += f" buffer_load_dwordx4 v[{128+4*i}:{131+4*i}], v2, s[16:19], 0 offen offset:0\n v_add_u32 v2, 8192, v2\n"
    s += " v_lshlrev_b32 v2, 4, v0\n s_mov_b32 s44, 0\n"
    for i in range(8):
        s += f" s_add_u32 m0, s47, {8192*i}\n s_add_u32 s44, s44, 8192\n buffer_load_dwordx4 v2, s[16:19], s44 offen lds\n"
    s += "".join(f" v_mov_b32 v{96+i}, 0\n" for i in range(32))
    s += " s_waitcnt vmcnt(0)\n s_barrier\n"
    for i in range(8): s += f" ds_read_b128 v[{4+4*i}:{7+4*i}], v3 offset:{1024*i}\n"
    s += " s_waitcnt lgkmcnt(0)\n"
    for i in range(16): s += f" v_and_b32 v{60+i}, 0x3fff0000, v{4+i}\n"
    s += " s_lshl_b32 s3, s2, 3\n s_add_u32 s3, s3, s20\n s_mul_i32 s3, s3, 16\n s_mov_b32 s21, 0\n s_and_b32 s44, s2, 7\n s_lshl_b32 s44, s44, 17\n s_mov_b32 s45, s44\n"
    s += " s_memtime s[12:13]\n s_memrealtime s[14:15]\n s_waitcnt lgkmcnt(0)\n"
    ring = lambda k: f"v[{4+4*(k%8)}:{7+4*(k%8)}]"
    def kloop():
        t = ''
        for g in range(29):
            if g % 2 == 0: t += " s_waitcnt lgkmcnt(4)\n"
            w = 128 + 4 * (g % 28)
            t += f" v_mfma_f32_32x32x16_bf16 v[96:111], v[{w}:{w+3}], {ring(g)}, v[96:111]\n ds_read_b128 {ring(g+6)}, v3 offset:{1024*((g*5)%60)}\n"
        return t
    def epi():
        t = ''; va = 0
        for j in range(76):
            va += 1
            if j % 5 == 4: t += f" v_exp_f32 v{84+va%8}, v{60+va%16}\n"
            else: t += f" v_fma_f32 v{76+va%8}, v{60+va%16}, v{60+(va*3)%16}, v{60+(va*7)%16}\n"
            if ndma * (j + 1) // 76 != ndma * j // 76:
                t += f" s_add_u32 m0, s47, {65536 + 8192*(j%4)}\n s_add_u32 s45, s45, 8192\n buffer_load_dwordx4 v2, s[16:19], s45 offen lds\n"
        t += " buffer_store_dwordx4 v[76:79], v2, s[28:31], s48 offen sc1\n s_waitcnt vmcnt(8)\n s_and_b32 s45, s45, 0x1ffff\n s_add_u32 s45, s45, s44\n"
        return t
    bar = " s_barrier\n" if 'b' in mode else ''
    if 's' in mode:
        s += " s_cmp_ge_u32 s20, 4\n s_cbranch_scc1 MID\n"
    s += "LOOP:\n" + kloop() + "MID0:\n" + bar + epi() + bar + f" s_add_u32 s21, s21, 1\n s_cmp_lt_u32 s21, {nseg}\n s_cbranch_scc1 LOOP\n s_branch END\n"
    s += "MID:\n" + epi() + bar + kloop() + bar + f" s_add_u32 s21, s21, 1\n s_cmp_lt_u32 s21, {nseg}\n s_cbranch_scc1 MID\nEND:\n"
    s += """ s_memtime s[22:23]
 s_memrealtime s[24:25]
 s_waitcnt lgkmcnt(0) vmcnt(0)
 s_sub_u32 s22, s22, s12
 s_sub_u32 s24, s24, s14
 v_mov_b32 v126, s22
 v_mov_b32 v127, s24
 v_mov_b32 v125, 0
 buffer_store_dwordx2 v[126:127], v125, s[8:11], s3 offen
 s_waitcnt vmcnt(0)
"""
    return s
if ON_GPU:
    out = DeviceBuffer(1 << 24)
    rnd = (np.random.randn(1 << 20).astype(np.float32).view(np.uint32) >> 16).astype(np.uint16)
    R = DeviceBuffer.from_numpy(rnd)
for n, c in enumerate([('', 7), ('s', 7), ('b', 7), ('sb', 7), ('sb', 11), ('s', 11), ('', 11)]):
    k = load(f'k{n}', kern(*c), vgpr=256, accum=256)
    if not ON_GPU: continue
    res = []
    for it in range(6):
        k.launch((224, 1, 1), (512, 1, 1), kargs(out.ptr, R.ptr), shared_mem=131072); sync()
        r = out.to_numpy(np.uint32, (224 * 8, 4))[:, :2].astype(np.float64)
        res.append((r[:, 0].max() / 32, r[:, 0].mean() / 32, r[:, 1].mean() * 10 / 32))
    m = np.median(np.array(res[1:]), axis=0)
    print(f'mode {c}: clk per block (per SIMD) max {m[0]:.0f} mean {m[1]:.0f}  ns/block {m[2]:.0f}')
```
